```python
import torch

def _softmax(x, axis=-1):
    return torch.softmax(x, dim=axis)
def _gelu(x):
    return torch.nn.functional.gelu(x, approximate="tanh")
def _silu(x):
    return torch.nn.functional.silu(x)
def _sigmoid(x):
    return torch.sigmoid(x)
def _layernorm(x, axis=-1, eps=1e-5):
    m = x.mean(dim=axis, keepdim=True)
    v = x.var(dim=axis, keepdim=True, unbiased=False)
    return (x - m) / torch.sqrt(v + eps)
def _scatter_add(tgt, idx, src, axis=0):
    return tgt.clone().index_add_(axis, idx, src)
def _segment_sum(src, seg, n):
    out = torch.zeros((n,) + src.shape[1:], dtype=src.dtype)
    return out.index_add_(0, seg, src)
def _pad(x, pw):
    flat = tuple(v for pair in reversed(pw) for v in pair)
    return torch.nn.functional.pad(x, flat)

kernel_name = 'sequential_preLN__softmax_full_mha__swiglu_ffn__prompt'

def setup_inputs():

    _w = (lambda a: (lambda t: t.to(torch.bfloat16) if t.is_floating_point() else t)(torch.as_tensor(a)))
    def _A_setup():
        B, S, D = 1, 2048, 576
        return {
            "x": _w((lambda *s: torch.randn(*s, dtype=torch.bfloat16) * 0.05)(B, S, D)),
            "wqkv": _w((lambda *s: torch.randn(*s, dtype=torch.bfloat16) * 0.05)(D, 3 * D)),
            "wo": _w((lambda *s: torch.randn(*s, dtype=torch.bfloat16) * 0.05)(D, D)),
        }
    _A_in = _A_setup()

    def _B_setup():
        B, S, D, F = 1, 2048, 576, 4608
        return {
            "x": _w((lambda *s: torch.randn(*s, dtype=torch.bfloat16) * 0.05)(B, S, D)),
            "w_gate": _w((lambda *s: torch.randn(*s, dtype=torch.bfloat16) * 0.05)(D, F)),
            "w_up": _w((lambda *s: torch.randn(*s, dtype=torch.bfloat16) * 0.05)(D, F)),
            "w_down": _w((lambda *s: torch.randn(*s, dtype=torch.bfloat16) * 0.05)(F, D)),
        }
    _B_in = _B_setup()

    return {
        "A_x": _A_in["x"],
        "A_wqkv": _A_in["wqkv"],
        "A_wo": _A_in["wo"],
        "B_x": _B_in["x"],
        "B_w_gate": _B_in["w_gate"],
        "B_w_up": _B_in["w_up"],
        "B_w_down": _B_in["w_down"],
    }

def reference(A_x, A_wqkv, A_wo, B_x, B_w_gate, B_w_up, B_w_down):
    def _A_ref(x, wqkv, wo):
        B, S, D = x.shape
        H = 32; Dh = D // H
        qkv = (lambda x, *d: x.permute(*d))((x @ wqkv).reshape(B, S, 3, H, Dh), 2, 0, 3, 1, 4)
        q, k, v = qkv[0], qkv[1], qkv[2]
        scale = Dh ** -0.5
        scores = torch.einsum("bhqd,bhkd->bhqk", q, k) * scale
        p = _softmax(scores, axis=-1)
        o = torch.einsum("bhqk,bhkd->bhqd", p, v)
        return (lambda x, *d: x.permute(*d))(o, 0, 2, 1, 3).reshape(B, S, D) @ wo

    def _B_ref(x, w_gate, w_up, w_down):
        g = _silu(x @ w_gate)
        u = x @ w_up
        return (g * u) @ w_down

    x = A_x
    h = x + _A_ref(_layernorm(x, axis=-1), A_wqkv, A_wo)
    h2 = h + _B_ref(_layernorm(h, axis=-1), B_w_gate, B_w_up, B_w_down)
    return h2
```

```python
import sys
HDR = """; @launch grid=({grid},1,1) block=({block},1,1) lds={lds}
.amdgcn_target "amdgcn-amd-amdhsa--gfx950"
.text
.globl {name}_kernel
.p2align 8
.type {name}_kernel,@function
{name}_kernel:
    s_load_dwordx2 s[4:5], s[0:1], 0
    s_load_dwordx2 s[6:7], s[0:1], 8
    s_waitcnt lgkmcnt(0)
    s_mov_b32 s8, s4
    s_mov_b32 s9, s5
    s_mov_b32 s10, 0x4000000
    s_mov_b32 s11, 0x00020000
    s_mov_b32 s12, s6
    s_mov_b32 s13, s7
    s_mov_b32 s14, 0x400000
    s_mov_b32 s15, 0x00020000
    v_lshrrev_b32 v1, 6, v0
    s_nop 0
    v_readfirstlane_b32 s20, v1
    v_and_b32 v1, 63, v0             ; lane
{setup}
    s_barrier
    s_memtime s[24:25]
    s_memrealtime s[28:29]
    s_waitcnt lgkmcnt(0)
    s_mov_b32 s21, {iters}
.p2align 6
L_loop:
{body}
    s_sub_u32 s21, s21, 1
    s_cmp_lg_u32 s21, 0
    s_cbranch_scc1 L_loop
{post}
    s_memtime s[26:27]
    s_memrealtime s[30:31]
    s_waitcnt lgkmcnt(0)
    s_sub_u32 s26, s26, s24
    s_sub_u32 s30, s30, s28
    s_mul_i32 s22, s2, {nwaves}
    s_add_u32 s22, s22, s20
    s_lshl_b32 s22, s22, 3
    v_mov_b32 v2, s26
    v_mov_b32 v3, s30
    v_mov_b32 v4, s22
    v_cmp_eq_u32 vcc, 0, v1
    s_and_saveexec_b64 s[32:33], vcc
    buffer_store_dwordx2 v[2:3], v4, s[12:15], 0 offen
    s_waitcnt vmcnt(0)
    s_endpgm
.section .rodata,"a"
.p2align 6
.amdhsa_kernel {name}_kernel
  .amdhsa_next_free_vgpr {vgpr}
  .amdhsa_next_free_sgpr 102
  .amdhsa_accum_offset {accum}
  .amdhsa_group_segment_fixed_size 0
  .amdhsa_kernarg_size 16
  .amdhsa_user_sgpr_count 2
  .amdhsa_user_sgpr_kernarg_segment_ptr 1
  .amdhsa_system_sgpr_workgroup_id_x 1
.end_amdhsa_kernel
"""
def gen(name, body, setup="", post="", grid=256, block=256, lds=0, iters=1000, vgpr=128, accum=None):
    if accum is None: accum = min(vgpr, 256)
    s = HDR.format(name=name, body=body, setup=setup, post=post, grid=grid, block=block, lds=lds, iters=iters, vgpr=vgpr, accum=accum, nwaves=block // 64)
    open(name + ".s", "w").write(s)
    return name + ".s"
```

```python
from mbgen import gen
files = []
setupA = """    v_lshlrev_b32 v10, 4, v0
    s_mov_b32 s40, 0
"""
bodyA = """    buffer_load_dwordx4 v[16:19], v10, s[8:11], s40 offen
    s_add_u32 s40, s40, 4096
    s_waitcnt vmcnt(16)
"""
files.append(gen("readA", bodyA, setup=setupA, post="    s_waitcnt vmcnt(0)", iters=256, vgpr=64, accum=64))
setupB = """    v_lshlrev_b32 v10, 4, v1
    s_lshl_b32 s40, s2, 12
    s_lshl_b32 s41, s20, 10
    s_add_u32 s40, s40, s41
"""
bodyB = """    buffer_load_dwordx4 v[16:19], v10, s[8:11], s40 offen
    s_waitcnt vmcnt(0)
"""
files.append(gen("lat1", bodyB, setup=setupB, iters=1, vgpr=64, accum=64))
setupC = """    v_lshlrev_b32 v10, 4, v0
    s_lshl_b32 s40, s2, 12
    s_and_b32 s40, s40, 0x7ffff
"""
files.append(gen("read256k", bodyA, setup=setupC, post="    s_waitcnt vmcnt(0)", iters=64, vgpr=64, accum=64))
print(" ".join(files))
```

```python
import re

TRANS = ("v_exp_f32", "v_log_f32", "v_rcp_f32", "v_rsq_f32", "v_sqrt_f32", "v_sin_f32", "v_cos_f32",
         "v_exp_f16", "v_rcp_f16", "v_rcp_iflag_f32")

_REG_RE = re.compile(r'(?<![\w.])([vas])(?:(\d+)|\[(\d+):(\d+)\])(?![\w])')


def regs_of(tok):
    out = set()
    for m in _REG_RE.finditer(tok):
        k = m.group(1)
        if m.group(2) is not None:
            out.add((k, int(m.group(2))))
        else:
            for i in range(int(m.group(3)), int(m.group(4)) + 1):
                out.add((k, i))
    t = tok.strip()
    if t in ("vcc", "vcc_lo", "vcc_hi"):
        out.add(("x", "vcc"))
    if t in ("exec", "exec_lo", "exec_hi"):
        out.add(("x", "exec"))
    if t == "m0":
        out.add(("x", "m0"))
    return out


def split_ops(s):
    ops, depth, cur = [], 0, ""
    for ch in s:
        if ch == "[":
            depth += 1
        if ch == "]":
            depth -= 1
        if ch == "," and depth == 0:
            ops.append(cur.strip()); cur = ""
        else:
            cur += ch
    if cur.strip():
        ops.append(cur.strip())
    return ops


class Ins:
    __slots__ = ("text", "op", "kind", "dst", "src", "srcA", "srcB", "srcC", "passes", "states", "wide_store", "lds_dma", "dpp", "sdwa")

    def __init__(self, text):
        self.text = text
        t = text.split(";")[0].strip()
        parts = t.split(None, 1)
        self.op = op = parts[0]
        rest = parts[1] if len(parts) > 1 else ""
        ops = split_ops(rest)
        mods = ""
        if ops:
            last = ops[-1].split(None, 1)
            if len(last) > 1:
                ops[-1] = last[0]
                mods = last[1]
        self.dst, self.src = set(), set()
        self.srcA = self.srcB = self.srcC = set()
        self.passes = 0
        self.states = 1
        self.wide_store = False
        self.lds_dma = False
        self.dpp = ("row_" in mods or "quad_perm" in mods or "wave_" in mods or "_dpp" in op)
        self.sdwa = "_sdwa" in op or "op_sel" in mods
        R = [regs_of(o) for o in ops]
        U = lambda l: set().union(*l) if l else set()
        if op == "s_nop":
            self.kind = "nop"; self.states = int(ops[0], 0) + 1
        elif op.startswith("v_mfma"):
            self.kind = "mfma"
            self.dst = R[0]; self.srcA, self.srcB, self.srcC = R[1], R[2], R[3]
            self.src = R[1] | R[2] | R[3]
            self.passes = 8 if "32x32" in op else 4
        elif op.startswith("v_cmp"):
            self.kind = "valu"; self.dst = R[0]; self.src = U(R[1:])
            if op.startswith("v_cmpx"):
                self.dst = self.dst | {("x", "exec")}
        elif op.startswith("v_"):
            self.kind = "valu"
            ndst = 1
            if op.startswith(("v_add_co", "v_sub_co", "v_addc_co", "v_subb_co", "v_subrev_co", "v_mad_u64", "v_div_scale")):
                ndst = 2
            self.dst = U(R[:ndst]); self.src = U(R[ndst:])
            if op.startswith(("v_fmac", "v_dot2c", "v_mac", "v_pk_fmac", "v_writelane")) or "UNUSED_PRESERVE" in mods or self.dpp:
                self.src |= R[0]
            if op.startswith("v_permlane") and "swap" in op:
                self.dst = R[0] | R[1]; self.src = R[0] | R[1]
            if op.startswith("v_swap"):
                self.dst = R[0] | R[1]; self.src = R[0] | R[1]
        elif op.startswith(("buffer_", "global_", "flat_")):
            self.kind = "vmem"
            islds = (" lds" in (" " + mods)) or op.startswith("global_load_lds")
            if islds:
                self.lds_dma = True; self.src = U(R) | {("x", "m0")}
            elif "store" in op or "atomic" in op:
                self.src = U(R)
                if op.endswith(("x3", "x4")):
                    self.wide_store = True
                    self.srcA = R[0] if op.startswith("buffer_") else R[1]
                if "atomic" in op and "sc0" in mods:
                    self.dst = R[0]
            elif "wbl2" in op or "inv" in op:
                pass
            else:
                self.dst = R[0]; self.src = U(R[1:])
                if "d16" in op:
                    self.src |= R[0]
        elif op.startswith("ds_"):
            self.kind = "ds"
            if op.startswith(("ds_read", "ds_bpermute", "ds_permute", "ds_swizzle")) or "_rtn" in op:
                self.dst = R[0]; self.src = U(R[1:])
            else:
                self.src = U(R)
        elif op.startswith("s_"):
            self.kind = "salu"
            if op.startswith(("s_cmp", "s_cbranch", "s_branch", "s_waitcnt", "s_barrier", "s_endpgm", "s_setprio", "s_sleep", "s_bitcmp", "s_setpc")):
                self.src = U(R)
            else:
                self.dst = R[0] if R else set(); self.src = U(R[1:])
                if "saveexec" in op:
                    self.dst = self.dst | {("x", "exec")}
            if op.startswith(("s_load", "s_memtime", "s_memrealtime", "s_buffer_load", "s_atomic")):
                self.kind = "smem"
        else:
            raise ValueError("unknown instruction: " + text)


def isv(r):
    return r[0] in ("v", "a")


def need_states(p, c):
    n = 0
    pv = {r for r in p.dst if isv(r)}
    ps = {r for r in p.dst if not isv(r)}
    if p.kind == "valu":
        if c.kind == "mfma" and pv & c.src:
            n = max(n, 2)
        if p.op in TRANS or p.op.rstrip("_e32").rstrip("_e64") in TRANS:
            if c.kind in ("valu", "mfma") and pv & c.src and c.op not in TRANS:
                n = max(n, 1)
            if c.kind in ("vmem", "ds") and pv & c.src:
                n = max(n, 1)
        if c.kind == "valu":
            if c.op.startswith(("v_readlane", "v_readfirstlane")) and pv & c.src:
                n = max(n, 1)
            if c.dpp and pv & c.src:
                n = max(n, 2)
            if c.op.startswith("v_permlane") and pv & c.src:
                n = max(n, 2)
            if p.sdwa and (pv & (c.src | c.dst)):
                n = max(n, 1)
            if ps & c.src:
                n = max(n, 4 if c.op.startswith(("v_readlane", "v_writelane")) else 2)
            if ("x", "vcc") in ps and c.op.startswith("v_div_fmas"):
                n = max(n, 4)
            if ("x", "exec") in ps:
                n = max(n, 5 if c.dpp else 4)
        if c.kind == "mfma" and ("x", "exec") in ps:
            n = max(n, 4)
        if c.kind == "vmem" and ps & c.src:
            n = max(n, 5)
        if c.kind in ("salu", "smem") and ps & c.src:
            n = max(n, 2)
        if p.op.startswith("v_dot"):
            if pv & (c.src | c.dst):
                if c.op == p.op and not (pv & (c.src - regs_last_src(c))):
                    pass
                else:
                    n = max(n, 3)
    if p.kind == "mfma":
        P = p.passes
        if c.kind == "mfma":
            if p.dst & c.srcC:
                if not (c.srcC == p.dst and c.passes == P):
                    n = max(n, P + 2)
            if p.dst & (c.srcA | c.srcB):
                n = max(n, P + 4)
            if (p.dst & c.dst) and not (p.dst & c.srcC):
                n = max(n, P + 2)
        elif c.kind in ("valu", "vmem", "ds"):
            if p.dst & (c.src | c.dst):
                n = max(n, P + 4)
        if c.kind == "valu" and p.srcC & c.dst:
            n = max(n, P - 1)
        if c.kind in ("vmem", "ds") and (p.srcC & c.dst):
            n = max(n, P - 1)
    if p.kind == "salu" and ("x", "m0") in p.dst and c.kind in ("vmem", "ds") and c.lds_dma:
        n = max(n, 1)
    if p.kind == "vmem" and p.wide_store and (p.srcA & c.dst):
        n = max(n, 2 if c.kind == "valu" else 1)
    return n


def regs_last_src(c):
    t = c.text.split(";")[0].strip().split(None, 1)[1]
    ops = split_ops(t)
    if c.op.startswith("v_dot2c"):
        return regs_of(ops[0])
    return regs_of(ops[-1].split()[0])


MAXW = 20


class Kernel:
    def __init__(self, name):
        self.name = name
        self.items = []
        self.nlabel = 0
        self.pads = []

    def label(self, name=None):
        if name is None:
            self.nlabel += 1
            name = f"L{self.name}_{self.nlabel}"
        return name

    def place(self, name):
        self.items.append(("label", name))

    def raw(self, text):
        self.items.append(("raw", text))

    def __call__(self, text):
        for line in text.strip().split("\n"):
            line = line.strip()
            if not line or line.startswith(";"):
                continue
            if line.endswith(":"):
                self.place(line[:-1]); continue
            if line.startswith("."):
                self.raw(line); continue
            self.items.append(("ins", Ins(line)))

    def finalize(self, verbose=False):
        class N:
            __slots__ = ("kind", "val", "prev", "next", "preds")
        nodes = []
        for it in self.items:
            n = N(); n.kind, n.val = it; n.preds = []; n.prev = n.next = None
            if nodes:
                n.prev = nodes[-1]; nodes[-1].next = n
            nodes.append(n)
        head = nodes[0]
        lab = {n.val: n for n in nodes if n.kind == "label"}
        for n in nodes:
            if n.kind == "ins" and n.val.op.startswith(("s_cbranch", "s_branch")):
                tgt = n.val.text.split(";")[0].split()[-1]
                lab[tgt].preds.append(n)

        def need_for(node):
            c = node.val
            need = 0
            why = None
            stack = [(node.prev, 0, True)]
            visited = set()
            while stack:
                j, d, fall = stack.pop()
                while j is not None and d < MAXW:
                    key = (id(j), d)
                    if key in visited:
                        break
                    visited.add(key)
                    if j.kind == "label":
                        for p in j.preds:
                            stack.append((p, d, False))
                        j = j.prev; fall = True
                        continue
                    if j.kind == "raw":
                        j = j.prev
                        continue
                    ins = j.val
                    if fall and ins.op in ("s_branch", "s_endpgm", "s_setpc_b64"):
                        break
                    fall = True
                    n = need_states(ins, c)
                    if n - d > need:
                        need = n - d; why = ins.text
                    d += ins.states
                    j = j.prev
            return need, why

        changed = True
        while changed:
            changed = False
            n = head
            while n is not None:
                if n.kind == "ins" and n.val.kind != "nop":
                    need, why = need_for(n)
                    if need > 0:
                        self.pads.append((n.val.text, need, why))
                        k = need
                        while k > 0:
                            m = min(k, 16)
                            q = N(); q.kind = "ins"; q.val = Ins(f"s_nop {m-1}"); q.preds = []
                            q.prev = n.prev; q.next = n
                            n.prev.next = q; n.prev = q
                            k -= m
                        changed = True
                n = n.next
        items = []
        n = head
        while n is not None:
            items.append((n.kind, n.val)); n = n.next
        self.items = items
        if verbose:
            for t, k, why in self.pads:
                print(f"  [pad {self.name}] {k} before: {t}   <- {why}")

    def text(self):
        out = []
        for it in self.items:
            if it[0] == "ins":
                out.append("    " + it[1].text)
            elif it[0] == "label":
                out.append(it[1] + ":")
            else:
                out.append(it[1])
        return "\n".join(out)
```

```python
import math, struct
from asmlib import Kernel

NAME = "sequential_preLN__softmax_full_mha__swiglu_ffn__prompt"
S, D, H, DH, F = 2048, 576, 32, 18, 4608

KV_TILE = 2368
KV_HEAD = 64 * KV_TILE
Q_TILE = 1152
Q_HEAD = 64 * Q_TILE
def al(x, a=4096): return (x + a - 1) // a * a
WS_KV = 0
WS_Q = al(WS_KV + 32 * KV_HEAD)
WS_MEANX = al(WS_Q + 32 * Q_HEAD)
WS_O = al(WS_MEANX + S * 4)
WOP_ROW = 584 * 16
WS_WOP = al(WS_O + 64 * 36 * 1024)
WS_HC = al(WS_WOP + 72 * WOP_ROW)
WS_MEANH = al(WS_HC + 64 * 36 * 1024)
WS_SSQ = al(WS_MEANH + S * 4)
WS_WGU = al(WS_SSQ + S * 16)
WS_H = al(WS_WGU + 288 * 36 * 1024)
WS_WDP = al(WS_H + 128 * 144 * 1024)
WS_END = al(WS_WDP + 144 * 4 * 576 * 16)
WS_SIZE = 268435456

SZ_X = S * D * 2
SZ_WQKV = D * 3 * D * 2
SZ_WO = D * D * 2
SZ_WG = D * F * 2
SZ_OUT = S * D * 2
OOB = 0x40000000

def f32(x):
    return struct.unpack("<I", struct.pack("<f", x))[0]
def hexf(x):
    return "0x%08x" % f32(x)

LOG2E = 1.4426950408889634
QSCALE = DH ** -0.5 * LOG2E

def srd(k, s, lo, size):
    k(f"""s_mov_b32 s{s}, s{lo}
    s_and_b32 s{s+1}, s{lo+1}, 0xffff
    s_mov_b32 s{s+2}, {size}
    s_mov_b32 s{s+3}, 0x00020000""")

def r4(b, kind="v"): return f"{kind}[{b}:{b+3}]"
def r2(b, kind="v"): return f"{kind}[{b}:{b+1}]"
def r16(b, kind="v"): return f"{kind}[{b}:{b+15}]"

def interleave(main, *others):
    n = len(main)
    out = []
    pos = [0] * len(others)
    for i, m in enumerate(main):
        if isinstance(m, list): out += m
        else: out.append(m)
        for oi, o in enumerate(others):
            tgt = (len(o) * (i + 1) + n - 1) // n
            while pos[oi] < tgt:
                x = o[pos[oi]]
                if isinstance(x, list): out += x
                else: out.append(x)
                pos[oi] += 1
    return out

import os
STAMP = bool(os.environ.get("STAMP"))
WS_DBG = 64 << 20
ST0 = 64
def stamp(k, i, real=False):
    if not STAMP: return
    k(f"{'s_memrealtime' if real else 's_memtime'} s[{ST0+2*i}:{ST0+2*i+1}]\ns_waitcnt lgkmcnt(0)")
def stamp_flush(k, kid, swave, sWS, n, vt=(250, 251)):
    if not STAMP: return
    k(f"""s_lshl_b32 s62, s2, 3
    s_add_u32 s62, s62, s{swave}
    s_lshl_b32 s62, s62, 6
    s_add_u32 s62, s62, {WS_DBG + kid * 256 * 8 * 64}
    v_mov_b32 v{vt[1]}, 0""")
    for i in range(n):
        k(f"""v_mov_b32 v{vt[0]}, s{ST0+2*i}
        buffer_store_dword v{vt[0]}, v{vt[1]}, s[{sWS}:{sWS+3}], s62 offen offset:{4*i}""")
```

```python
import sys, os
sys.path.insert(0, os.path.dirname(__file__))
from common import *
import importlib

def build(kernels, out_path, verbose=False):
    ref = open(f"cdna_kernels/{NAME}.s.ref").read().split("\n")
    hdr = [l for l in ref if l.startswith(";") and "@launch" not in l and "Override launch" not in l and "grid=ceil" not in l]
    lines = list(hdr)
    for k, m in kernels:
        lines.append(f"; @launch kernel={k.name}_kernel grid=({m['grid']},1,1) block=({m['block']},1,1) lds={m['lds']}")
    lines.append('.amdgcn_target "amdgcn-amd-amdhsa--gfx950"')
    lines.append(".text")
    seen = set()
    for k, m in kernels:
        if k.name in seen: continue
        seen.add(k.name)
        k.finalize(verbose)
        lines += [f".globl {k.name}_kernel", ".p2align 8", f".type {k.name}_kernel,@function", f"{k.name}_kernel:"]
        lines.append(k.text())
    lines.append("ALL_CODE_END:")
    lines.append('.section .rodata,"a"')
    seen = set()
    for k, m in kernels:
        if k.name in seen: continue
        seen.add(k.name)
        acc = (m['vgpr'] + 3) // 4 * 4
        nfv = acc + m['agpr'] if m['agpr'] else m['vgpr']
        lines += [".p2align 6", f".amdhsa_kernel {k.name}_kernel",
                  f"  .amdhsa_next_free_vgpr {nfv}", f"  .amdhsa_next_free_sgpr {m.get('sgpr', 96)}",
                  f"  .amdhsa_accum_offset {acc}", "  .amdhsa_group_segment_fixed_size 0",
                  "  .amdhsa_kernarg_size 80", "  .amdhsa_user_sgpr_count 2",
                  "  .amdhsa_user_sgpr_kernarg_segment_ptr 1", "  .amdhsa_system_sgpr_workgroup_id_x 1",
                  ".end_amdhsa_kernel"]
    open(out_path, "w").write("\n".join(lines) + "\n")

if __name__ == "__main__":
    names = sys.argv[1].split(",") if len(sys.argv) > 1 else ["k1", "k2", "k3", "k4", "k5"]
    out = sys.argv[2] if len(sys.argv) > 2 else f"cdna_kernels/{NAME}.s"
    ks = []
    for n in names:
        mod = importlib.import_module(n)
        ks.append(getattr(mod, "gen_" + n)())
    build(ks, out, verbose="-v" in sys.argv)
```
